```python
import torch

def _softmax(x, axis=-1):
    return torch.softmax(x, dim=axis)
def _gelu(x):
    return torch.nn.functional.gelu(x, approximate="tanh")
def _silu(x):
    return torch.nn.functional.silu(x)
def _sigmoid(x):
    return torch.sigmoid(x)
def _layernorm(x, axis=-1, eps=1e-5):
    m = x.mean(dim=axis, keepdim=True)
    v = x.var(dim=axis, keepdim=True, unbiased=False)
    return (x - m) / torch.sqrt(v + eps)
def _scatter_add(tgt, idx, src, axis=0):
    return tgt.clone().index_add_(axis, idx, src)
def _segment_sum(src, seg, n):
    out = torch.zeros((n,) + src.shape[1:], dtype=src.dtype)
    return out.index_add_(0, seg, src)
def _pad(x, pw):
    flat = tuple(v for pair in reversed(pw) for v in pair)
    return torch.nn.functional.pad(x, flat)

kernel_name = 'standalone__paged_block_table_kv_pagedattention__sampling'

def setup_inputs():

    _w = (lambda a: (lambda t: t.to(torch.bfloat16) if t.is_floating_point() else t)(torch.as_tensor(a)))
    B, Hq, Hkv, Sq, Skv, D = 32, 32, 4, 1, 2048, 128
    bs = 16
    nbps = max(1, Skv // bs)
    num_phys = B * nbps + 4
    bt = torch.randperm(num_phys)[: B * nbps].reshape(B, nbps).to(torch.int64)
    cl = (nbps * bs - (torch.arange(1, B + 1, dtype=torch.int64) * 2654435761) % max(1, nbps * bs // 2)).to(torch.int64)
    return {
        "q": _w((lambda *s: torch.randn(*s, dtype=torch.bfloat16) * 0.8)(B, Hq, Sq, D)),
        "k_cache": _w((lambda *s: torch.randn(*s, dtype=torch.bfloat16) * 0.8)(num_phys, bs, Hkv, D)),
        "v_cache": _w((lambda *s: torch.randn(*s, dtype=torch.bfloat16) * 0.05)(num_phys, bs, Hkv, D)),
        "block_table": _w(bt),
        "context_lens": _w(cl),
    }

def reference(q, k_cache, v_cache, block_table, context_lens):
    B, Hq, Sq, D = q.shape
    bs = k_cache.shape[1]
    Hkv = k_cache.shape[2]
    nbps = block_table.shape[1]
    Skv = nbps * bs
    bt = block_table.reshape(-1)
    k = (lambda x, *d: x.permute(*d))(k_cache[bt].reshape(B, Skv, Hkv, D), 0, 2, 1, 3)
    v = (lambda x, *d: x.permute(*d))(v_cache[bt].reshape(B, Skv, Hkv, D), 0, 2, 1, 3)
    g = Hq // Hkv
    qg = q.reshape(B, Hkv, g, Sq, D)
    scores = torch.einsum("bhgqd,bhkd->bhgqk", qg, k) * (D ** -0.5)
    pos = torch.arange(Skv)
    msk = pos[None, :] < context_lens[:, None]
    scores = torch.where(msk[:, None, None, None, :], scores, -1e9)
    p = _softmax(scores, axis=-1)
    out = torch.einsum("bhgqk,bhkd->bhgqd", p, v)
    return out.reshape(B, Hq, Sq, D)
```

```python
NAME = "standalone__paged_block_table_kv_pagedattention__sampling"
HEADER = """; Kernarg layout for this problem (64 bytes, ptrs only, base s[0:1]):
"""
KV_BYTES = 4100 * 16384
Q_BYTES = 32 * 32 * 128 * 2
BT_BYTES = 32 * 128 * 4
CL_BYTES = 32 * 4
OUT_BYTES = Q_BYTES
WS_BYTES = 268697600

import struct
def f32bits(x):
    return struct.unpack("<I", struct.pack("<f", x))[0]

class Asm:
    def __init__(self):
        self.lines = []
        self.nlabel = 0
    def __call__(self, s=""):
        for ln in s.split("\n"):
            self.lines.append("    " + ln.strip() if ln.strip() and not ln.strip().endswith(":") else ln.strip())
    def c(self, s):
        self.lines.append("    ; " + s)
    def label(self, name):
        self.lines.append(name + ":")
    def newlabel(self, base="L"):
        self.nlabel += 1
        return f"{base}_{self.nlabel}"
    def text(self):
        return "\n".join(self.lines) + "\n"

def vr(base, n=1):
    return f"v{base}" if n == 1 else f"v[{base}:{base+n-1}]"
def ar(base, n=1):
    return f"a{base}" if n == 1 else f"a[{base}:{base+n-1}]"
def sr(base, n=1):
    return f"s{base}" if n == 1 else f"s[{base}:{base+n-1}]"

def kernel_desc(name, nvgpr, nsgpr, accum):
    return f""".amdhsa_kernel {name}
  .amdhsa_next_free_vgpr {nvgpr}
  .amdhsa_next_free_sgpr {nsgpr}
  .amdhsa_accum_offset {accum}
  .amdhsa_group_segment_fixed_size 0
  .amdhsa_kernarg_size 64
  .amdhsa_user_sgpr_count 2
  .amdhsa_user_sgpr_kernarg_segment_ptr 1
  .amdhsa_system_sgpr_workgroup_id_x 1
.end_amdhsa_kernel
"""
```

```python
import sys, math
from common import *

POL = sys.argv[1] if len(sys.argv) > 1 else ""
OUT = sys.argv[2] if len(sys.argv) > 2 else f"cdna_kernels/{NAME}.s"
POLS = (" " + POL) if POL else ""
D = 3
C_SCALE = (128 ** -0.5) * math.log2(math.e)
NEG = 0xFF7F0000

a = Asm()
a.lines.append(HEADER.rstrip())
a.lines.append(f"; @launch kernel=pa_part_kernel grid=(256,1,1) block=(256,1,1) lds=0")
a.lines.append(f"; @launch kernel=pa_comb_kernel grid=(128,1,1) block=(256,1,1) lds=0")
a.lines.append('.amdgcn_target "amdgcn-amd-amdhsa--gfx950"')
a.lines.append(".text")

a.lines.append(".globl pa_part_kernel\n.p2align 8\n.type pa_part_kernel,@function\npa_part_kernel:")
SK, SV, SQ, SBT, SWS = 20, 24, 28, 32, 36
sB, sS, sH, sCL, sNT, sT, sEND, sNB = 40, 41, 42, 43, 44, 45, 46, 47
sC, sSEL0, sSEL1, sOA, sOB, sTL, sREM, sTMP, sTMP2 = 48, 49, 50, 51, 52, 53, 54, 55, 56
sM0 = 58
vL, vKO, vVO, vBA, vBB, vM, vLS, vT, vT2, vAL, vMC, vG4 = 0, 1, 2, 4, 5, 6, 7, 8, 9, 10, 11, 12
vQ = 16
vACC = 32
vS = 64
vP = 72
vX = 76
vV = 92
NV = vV + 32 * D
ACCOFF = (NV + 3) // 4 * 4
aK = 0

a(f"""
s_cmp_ge_u32 s2, 256
s_cbranch_scc1 A_done
s_load_dwordx16 s[4:19], s[0:1], 0
s_and_b32 s{sB}, s2, 31
s_lshr_b32 s{sS}, s2, 5
v_lshrrev_b32 v3, 6, v0
v_and_b32 v{vL}, 63, v0
s_nop 0
v_readfirstlane_b32 s{sH}, v3
v_and_b32 v13, 15, v{vL}
v_lshrrev_b32 v14, 4, v{vL}
v_lshlrev_b32 v{vKO}, 10, v13
v_lshl_add_u32 v{vKO}, v14, 4, v{vKO}
v_lshlrev_b32 v{vVO}, 12, v14
v_lshl_add_u32 v{vVO}, v13, 4, v{vVO}
v_lshlrev_b32 v{vG4}, 2, v14
s_mov_b32 s{sC}, {f32bits(C_SCALE):#x}
s_mov_b32 s{sSEL0}, 0x05040100
s_mov_b32 s{sSEL1}, 0x07060302
s_lshl_b32 s{sTMP}, s{sB}, 2
s_waitcnt lgkmcnt(0)
s_load_dword s{sCL}, s[12:13], s{sTMP}
s_mov_b32 s{SBT}, s10
s_mov_b32 s{SBT+1}, s11
s_mov_b32 s{SBT+2}, {BT_BYTES}
s_mov_b32 s{SBT+3}, 0x00020000
s_lshl_b32 s{sTMP2}, s{sB}, 9
v_lshlrev_b32 v15, 3, v{vL}
buffer_load_dwordx2 v[{vBA}:{vBB}], v15, s[{SBT}:{SBT+3}], s{sTMP2} offen
s_mov_b32 s{SK}, s6
s_mov_b32 s{SK+1}, s7
s_mov_b32 s{SK+2}, {KV_BYTES}
s_mov_b32 s{SK+3}, 0x00020000
s_mov_b32 s{SV}, s8
s_mov_b32 s{SV+1}, s9
s_mov_b32 s{SV+2}, {KV_BYTES}
s_mov_b32 s{SV+3}, 0x00020000
s_mov_b32 s{SQ}, s4
s_mov_b32 s{SQ+1}, s5
s_mov_b32 s{SQ+3}, 0x00020000
s_mov_b32 s{SWS}, s18
s_mov_b32 s{SWS+1}, s19
s_mov_b32 s{SWS+2}, {WS_BYTES}
s_mov_b32 s{SWS+3}, 0x00020000
""")
a.c("Q lane offset: (n)*256 + g*16 ; n>=8 -> OOB")
a(f"""
v_lshlrev_b32 v3, 8, v13
v_lshl_add_u32 v3, v14, 4, v3
v_mov_b32 v15, 0x7f000000
v_cmp_gt_u32 vcc, 8, v13
s_nop 1
v_cndmask_b32 v3, v15, v3, vcc
s_lshl_b32 s{sTMP}, s{sB}, 13
s_lshl_b32 s{sTMP2}, s{sH}, 11
s_add_u32 s{sTMP}, s{sTMP}, s{sTMP2}
s_waitcnt lgkmcnt(0)
""")
a.c("cl<=0 -> uniform softmax over all 2048 (Q=0); clamp to 2048")
a(f"""
s_cmp_gt_i32 s{sCL}, 0
s_cselect_b32 s{SQ+2}, {Q_BYTES}, 0
s_cselect_b32 s{sCL}, s{sCL}, 2048
s_min_i32 s{sCL}, s{sCL}, 2048
""")
for j in range(4):
    a(f"buffer_load_dwordx4 {vr(vQ+4*j,4)}, v3, s[{SQ}:{SQ+3}], s{sTMP} offen offset:{64*j}")
a(f"""
s_add_u32 s{sNT}, s{sCL}, 31
s_lshr_b32 s{sNT}, s{sNT}, 5
s_add_u32 s{sNB}, s{sCL}, 15
s_lshr_b32 s{sNB}, s{sNB}, 4
s_mul_i32 s{sT}, s{sNT}, s{sS}
s_lshr_b32 s{sT}, s{sT}, 3
s_add_u32 s{sTMP}, s{sS}, 1
s_mul_i32 s{sEND}, s{sNT}, s{sTMP}
s_lshr_b32 s{sEND}, s{sEND}, 3
v_mov_b32 v{vM}, {NEG:#x}
v_mov_b32 v{vLS}, 0
""")
for i in range(32):
    a(f"v_mov_b32 v{vACC+i}, 0")
a(f"""
s_lshl_b32 s{sTMP}, s{sH}, 8
s_waitcnt vmcnt(4)
v_lshlrev_b32 v{vBA}, 14, v{vBA}
v_lshlrev_b32 v{vBB}, 14, v{vBB}
v_add_u32 v{vBA}, s{sTMP}, v{vBA}
v_add_u32 v{vBB}, s{sTMP}, v{vBB}
s_mov_b32 s{sTL}, s{sT}
s_cmp_ge_u32 s{sT}, s{sEND}
s_cbranch_scc1 A_fin
""")

def issue_loads(slot):
    a(f"""
    v_readlane_b32 s{sOA}, v{vBA}, s{sTL}
    v_readlane_b32 s{sOB}, v{vBB}, s{sTL}
    s_cmp_lt_u32 s{sTL}, s{sEND}
    s_cselect_b32 s{SK+2}, {KV_BYTES}, 0
    s_cselect_b32 s{SV+2}, {KV_BYTES}, 0
    s_lshl_b32 s{sTMP}, s{sTL}, 1
    s_add_u32 s{sTMP}, s{sTMP}, 1
    s_cmp_lt_u32 s{sTMP}, s{sNB}
    s_cselect_b32 s{sTMP2}, s{SK+2}, 0
    """)
    for j in range(4):
        a(f"buffer_load_dwordx4 {ar(aK+32*slot+4*j,4)}, v{vKO}, s[{SK}:{SK+3}], s{sOA} offen offset:{64*j}{POLS}")
    a(f"s_mov_b32 s{SK+2}, s{sTMP2}")
    for j in range(4):
        a(f"buffer_load_dwordx4 {ar(aK+32*slot+16+4*j,4)}, v{vKO}, s[{SK}:{SK+3}], s{sOB} offen offset:{64*j}{POLS}")
    for i in range(4):
        a(f"buffer_load_dwordx4 {vr(vV+32*slot+4*i,4)}, v{vVO}, s[{SV}:{SV+3}], s{sOA} offen offset:{1024*i}{POLS}")
    a(f"s_mov_b32 s{SV+2}, s{sTMP2}")
    for i in range(4):
        a(f"buffer_load_dwordx4 {vr(vV+32*slot+16+4*i,4)}, v{vVO}, s[{SV}:{SV+3}], s{sOB} offen offset:{1024*i}{POLS}")
    a(f"s_add_u32 s{sTL}, s{sTL}, 1")

a("s_nop 0")
for slot in range(D):
    issue_loads(slot)
a.label("A_loop")
for slot in range(D):
    a(f"s_waitcnt vmcnt({(D-1)*16+8})")
    for j in range(4):
        for blk in range(2):
            c = "0" if j == 0 else vr(vS+4*blk, 4)
            a(f"v_mfma_f32_16x16x32_bf16 {vr(vS+4*blk,4)}, {ar(aK+32*slot+16*blk+4*j,4)}, {vr(vQ+4*j,4)}, {c}")
    lab = a.newlabel("A_nomask")
    a(f"""
    s_lshl_b32 s{sREM}, s{sT}, 5
    s_sub_u32 s{sREM}, s{sCL}, s{sREM}
    s_cmp_ge_u32 s{sREM}, 32
    s_nop 4
    s_cbranch_scc1 {lab}
    """)
    a(f"v_mov_b32 v{vT}, {NEG:#x}")
    for e in range(8):
        off = (e & 3) + 16 * (e >> 2)
        a(f"s_sub_i32 s{sTMP}, s{sREM}, {off}")
        a(f"v_cmp_gt_i32 s[{sM0+2*e}:{sM0+2*e+1}], s{sTMP}, v{vG4}")
    a("s_nop 1")
    for e in range(8):
        a(f"v_cndmask_b32 v{vS+e}, v{vT}, v{vS+e}, s[{sM0+2*e}:{sM0+2*e+1}]")
    a.label(lab)
    a(f"""
    v_max3_f32 v{vT}, v{vS}, v{vS+1}, v{vS+2}
    v_max3_f32 v{vT}, v{vT}, v{vS+3}, v{vS+4}
    v_max3_f32 v{vT}, v{vT}, v{vS+5}, v{vS+6}
    v_max3_f32 v{vT}, v{vT}, v{vS+7}, v{vM}
    v_mov_b32 v{vT2}, v{vT}
    s_nop 1
    v_permlane32_swap_b32 v{vT}, v{vT2}
    v_max_f32 v{vT}, v{vT}, v{vT2}
    v_mov_b32 v{vT2}, v{vT}
    s_nop 1
    v_permlane16_swap_b32 v{vT}, v{vT2}
    v_max_f32 v{vT}, v{vT}, v{vT2}
    v_sub_f32 v{vAL}, v{vM}, v{vT}
    v_mul_f32 v{vMC}, s{sC}, v{vT}
    v_mul_f32 v{vAL}, s{sC}, v{vAL}
    v_mov_b32 v{vM}, v{vT}
    v_exp_f32 v{vAL}, v{vAL}
    """)
    for e in range(8):
        a(f"v_fma_f32 v{vS+e}, v{vS+e}, s{sC}, -v{vMC}")
    for e in range(8):
        a(f"v_exp_f32 v{vS+e}, v{vS+e}")
    a(f"v_mul_f32 v{vLS}, v{vLS}, v{vAL}")
    for i in range(32):
        a(f"v_mul_f32 v{vACC+i}, v{vACC+i}, v{vAL}")
    for e in range(8):
        a(f"v_add_f32 v{vLS}, v{vLS}, v{vS+e}")
    for e in range(4):
        a(f"v_cvt_pk_bf16_f32 v{vP+e}, v{vS+2*e}, v{vS+2*e+1}")
    a(f"s_waitcnt vmcnt({(D-1)*16})")
    V = vV + 32 * slot
    for w in range(4):
        X = vX + 8 * (w & 1)
        for p in range(2):
            sel = sSEL0 if p == 0 else sSEL1
            for r in range(4):
                lo = V + 16 * (r >> 1) + 4 * (2 * (r & 1)) + w
                hi = lo + 4
                a(f"v_perm_b32 v{X+4*p+r}, v{hi}, v{lo}, s{sel}")
        a("s_nop 1")
        for p in range(2):
            j = 2 * w + p
            a(f"v_mfma_f32_16x16x32_bf16 {vr(vACC+4*j,4)}, {vr(X+4*p,4)}, {vr(vP,4)}, {vr(vACC+4*j,4)}")
    issue_loads(slot)
    a(f"""
    s_add_u32 s{sT}, s{sT}, 1
    s_cmp_ge_u32 s{sT}, s{sEND}
    s_cbranch_scc1 A_fin
    """)
a("s_branch A_loop")
a.label("A_fin")
a.c("reduce l over lane groups; write partial: slot=(b*4+h)*8+s ; O at slot*4096, ml at 8MB + slot*64")
a(f"""
s_nop 7
v_mov_b32 v{vT2}, v{vLS}
s_nop 1
v_permlane32_swap_b32 v{vLS}, v{vT2}
v_add_f32 v{vLS}, v{vLS}, v{vT2}
v_mov_b32 v{vT2}, v{vLS}
s_nop 1
v_permlane16_swap_b32 v{vLS}, v{vT2}
v_add_f32 v{vLS}, v{vLS}, v{vT2}
s_lshl_b32 s{sTMP}, s{sB}, 2
s_add_u32 s{sTMP}, s{sTMP}, s{sH}
s_lshl_b32 s{sTMP}, s{sTMP}, 3
s_add_u32 s{sTMP}, s{sTMP}, s{sS}
s_lshl_b32 s{sOA}, s{sTMP}, 12
s_lshl_b32 s{sOB}, s{sTMP}, 6
s_add_u32 s{sOB}, s{sOB}, 0x800000
v_and_b32 v13, 15, v{vL}
v_lshrrev_b32 v14, 4, v{vL}
v_lshlrev_b32 v3, 9, v13
v_lshl_add_u32 v3, v14, 7, v3
v_mov_b32 v15, 0x7f000000
v_cmp_gt_u32 vcc, 8, v13
s_nop 1
v_cndmask_b32 v3, v15, v3, vcc
v_lshlrev_b32 v13, 3, v{vL}
v_cmp_gt_u32 vcc, 8, v{vL}
s_nop 1
v_cndmask_b32 v13, v15, v13, vcc
""")
for j in range(8):
    a(f"buffer_store_dwordx4 {vr(vACC+4*j,4)}, v3, s[{SWS}:{SWS+3}], s{sOA} offen offset:{16*j}")
a(f"buffer_store_dwordx2 v[{vM}:{vLS}], v13, s[{SWS}:{SWS+3}], s{sOB} offen")
a.label("A_done")
a("s_endpgm")

a.lines.append(".globl pa_comb_kernel\n.p2align 8\n.type pa_comb_kernel,@function\npa_comb_kernel:")
a(f"""
s_cmp_ge_u32 s2, 128
s_cbranch_scc1 B_done
s_load_dwordx2 s[4:5], s[0:1], 40
s_load_dwordx2 s[6:7], s[0:1], 56
v_lshlrev_b32 v1, 4, v0
v_lshrrev_b32 v2, 5, v0
v_lshlrev_b32 v2, 3, v2
s_lshl_b32 s16, s2, 15
s_lshl_b32 s17, s2, 9
s_add_u32 s17, s17, 0x800000
s_mov_b32 s18, {f32bits(C_SCALE):#x}
s_waitcnt lgkmcnt(0)
s_mov_b32 s8, s4
s_mov_b32 s9, s5
s_mov_b32 s10, {OUT_BYTES}
s_mov_b32 s11, 0x00020000
s_mov_b32 s12, s6
s_mov_b32 s13, s7
s_mov_b32 s14, {WS_BYTES}
s_mov_b32 s15, 0x00020000
""")
for s in range(8):
    a(f"buffer_load_dwordx2 v[{8+2*s}:{9+2*s}], v2, s[12:15], s17 offen offset:{64*s}")
for s in range(8):
    a(f"buffer_load_dwordx4 v[{24+4*s}:{27+4*s}], v1, s[12:15], s16 offen")
    a(f"s_add_u32 s16, s16, 4096")
a.c("out byte offset: wg*2048 + q*256 + (32g + j + 8i)*2")
a(f"""
v_lshrrev_b32 v3, 3, v0
v_lshlrev_b32 v3, 6, v3
v_and_b32 v4, 7, v0
v_lshl_add_u32 v3, v4, 1, v3
s_lshl_b32 s19, s2, 11
s_waitcnt vmcnt(8)
v_max3_f32 v5, v8, v10, v12
v_max3_f32 v5, v5, v14, v16
v_max3_f32 v5, v5, v18, v20
v_max_f32 v5, v5, v22
""")
for s in range(8):
    a(f"v_sub_f32 v{8+2*s}, v{8+2*s}, v5")
for s in range(8):
    a(f"v_mul_f32 v{8+2*s}, s18, v{8+2*s}")
for s in range(8):
    a(f"v_exp_f32 v{8+2*s}, v{8+2*s}")
a("s_nop 0")
a("v_mul_f32 v6, v8, v9")
for s in range(1, 8):
    a(f"v_fmac_f32 v6, v{8+2*s}, v{9+2*s}")
a("v_rcp_f32 v6, v6")
a("s_waitcnt vmcnt(0)")
for i in range(4):
    a(f"v_mul_f32 v{56+i}, v8, v{24+i}")
for s in range(1, 8):
    for i in range(4):
        a(f"v_fmac_f32 v{56+i}, v{8+2*s}, v{24+4*s+i}")
for i in range(4):
    a(f"v_mul_f32 v{56+i}, v{56+i}, v6")
for i in range(4):
    a(f"v_cvt_pk_bf16_f32 v{56+i}, v{56+i}, v{56+i}")
for i in range(4):
    a(f"buffer_store_short v{56+i}, v3, s[8:11], s19 offen offset:{16*i}")
a.label("B_done")
a("s_endpgm")

a.lines.append('.section .rodata,"a"\n.p2align 6')
a.lines.append(kernel_desc("pa_part_kernel", ACCOFF + 32 * D, 80, ACCOFF))
a.lines.append(".p2align 6")
a.lines.append(kernel_desc("pa_comb_kernel", 64, 32, 64))
open(OUT, "w").write(a.text())
print("wrote", OUT, "vgpr", NV, "accoff", ACCOFF)
```
